```python
import torch

def _softmax(x, axis=-1):
    return torch.softmax(x, dim=axis)
def _gelu(x):
    return torch.nn.functional.gelu(x, approximate="tanh")
def _silu(x):
    return torch.nn.functional.silu(x)
def _sigmoid(x):
    return torch.sigmoid(x)
def _layernorm(x, axis=-1, eps=1e-5):
    m = x.mean(dim=axis, keepdim=True)
    v = x.var(dim=axis, keepdim=True, unbiased=False)
    return (x - m) / torch.sqrt(v + eps)
def _scatter_add(tgt, idx, src, axis=0):
    return tgt.clone().index_add_(axis, idx, src)
def _segment_sum(src, seg, n):
    out = torch.zeros((n,) + src.shape[1:], dtype=src.dtype)
    return out.index_add_(0, seg, src)
def _pad(x, pw):
    flat = tuple(v for pair in reversed(pw) for v in pair)
    return torch.nn.functional.pad(x, flat)

kernel_name = 'gated_mix__sliding_local_dilated__moe_arch_mod__prompt'

def setup_inputs():

    _w = (lambda a: (lambda t: t.to(torch.bfloat16) if t.is_floating_point() else t)(torch.as_tensor(a)))
    def _A_setup():
        B, S, D = 1, 2048, 640
        return {
            "x": _w((lambda *s: torch.randn(*s, dtype=torch.bfloat16) * 0.05)(B, S, D)),
            "wqkv": _w((lambda *s: torch.randn(*s, dtype=torch.bfloat16) * 0.8)(D, 3 * D)),
            "wo": _w((lambda *s: torch.randn(*s, dtype=torch.bfloat16) * 0.05)(D, D)),
        }
    _A_in = _A_setup()

    def _B_setup():
        B, S, D, F, C = 1, 2048, 640, 1728, 1
        return {
            "x": _w((lambda *s: torch.randn(*s, dtype=torch.bfloat16) * 0.05)(B, S, D)),
            "w_r": _w((lambda *s: torch.randn(*s, dtype=torch.bfloat16) * 1.6)(D)),
            "w_gate": _w((lambda *s: torch.randn(*s, dtype=torch.bfloat16) * 0.4)(D, F)),
            "w_up": _w((lambda *s: torch.randn(*s, dtype=torch.bfloat16) * 0.4)(D, F)),
            "w_down": _w((lambda *s: torch.randn(*s, dtype=torch.bfloat16) * 0.4)(F, D)),
        }
    _B_in = _B_setup()

    return {
        "A_x": _A_in["x"],
        "A_wqkv": _A_in["wqkv"],
        "A_wo": _A_in["wo"],
        "B_x": _B_in["x"],
        "B_w_r": _B_in["w_r"],
        "B_w_gate": _B_in["w_gate"],
        "B_w_up": _B_in["w_up"],
        "B_w_down": _B_in["w_down"],
        "gate_w": _w((lambda *s: torch.randn(*s, dtype=torch.bfloat16) * 0.05)(640) * 16.0),
    }

def reference(A_x, A_wqkv, A_wo, B_x, B_w_r, B_w_gate, B_w_up, B_w_down, gate_w):
    def _A_ref(x, wqkv, wo):
        B, S, D = x.shape
        H = 32; Dh = D // H
        W, dil = 8, 2
        qkv = (lambda x, *d: x.permute(*d))((x @ wqkv).reshape(B, S, 3, H, Dh), 2, 0, 3, 1, 4)
        q, k, v = qkv[0], qkv[1], qkv[2]
        scale = Dh ** -0.5
        pos = torch.arange(S)
        off = torch.arange(W) * dil
        idx = pos[:, None] - off[None, :]
        mask = idx >= 0
        idx_c = torch.where(mask, idx, 0).reshape(-1)
        kg = k[:, :, idx_c, :].reshape(B, H, S, W, Dh)
        vg = v[:, :, idx_c, :].reshape(B, H, S, W, Dh)
        logits = torch.einsum("bhsd,bhswd->bhsw", q, kg) * scale
        logits = torch.where(mask[None, None, :, :], logits, -1e9)
        attn = _softmax(logits, axis=-1)
        o = torch.einsum("bhsw,bhswd->bhsd", attn, vg)
        return (lambda x, *d: x.permute(*d))(o, 0, 2, 1, 3).reshape(B, S, D) @ wo

    def _B_ref(x, w_r, w_gate, w_up, w_down):
        B, S, D = x.shape
        C = 1
        r = x @ w_r
        idx = torch.argsort(-r, axis=-1)[:, :C]
        idx_e = (lambda x, n, axis: torch.repeat_interleave(x, n, dim=axis))(idx.reshape(B, C, 1), D, axis=2)
        x_sel = (lambda x, i, axis: torch.take_along_dim(x, i, dim=axis))(x, idx_e, axis=1)
        g = _silu(x_sel @ w_gate)
        u = x_sel @ w_up
        y = (g * u) @ w_down
        r_sel = _sigmoid((lambda x, i, axis: torch.take_along_dim(x, i, dim=axis))(r, idx, axis=1))
        y = y * r_sel.reshape(B, C, 1)
        b_off = (torch.arange(B) * S).reshape(B, 1)
        flat_idx = (idx + b_off).reshape(B * C)
        zero = (x * 0.0).reshape(B * S, D)
        upd = _scatter_add(zero, flat_idx, y.reshape(B * C, D), axis=0)
        return x + upd.reshape(B, S, D)

    x = A_x
    g = _sigmoid((x * gate_w).sum(-1, keepdims=True))
    a = _A_ref(x, A_wqkv, A_wo)
    b = _B_ref(x, B_w_r, B_w_gate, B_w_up, B_w_down)
    return g * a + (1 - g) * b
```

```python
import sys
HDR = '.amdgcn_target "amdgcn-amd-amdhsa--gfx950"\n.text\n'
def kd(name, nv=64, ns=64):
    return f""".section .rodata,"a"
.p2align 6
.amdhsa_kernel {name}
  .amdhsa_next_free_vgpr {nv}
  .amdhsa_next_free_sgpr {ns}
  .amdhsa_accum_offset {nv}
  .amdhsa_group_segment_fixed_size 0
  .amdhsa_kernarg_size 96
  .amdhsa_user_sgpr_count 2
  .amdhsa_user_sgpr_kernarg_segment_ptr 1
  .amdhsa_system_sgpr_workgroup_id_x 1
.end_amdhsa_kernel
.text
"""
QKV = 0x0; O = 0x1000000; R = 0x2000000; G = 0x2010000; H = 0x2020000; Y = 0x2030000
def start(name, nwg):
    return f""".globl {name}
.p2align 8
.type {name},@function
{name}:
s_cmp_ge_u32 s2, {nwg}
s_cbranch_scc1 L_end_{name}
s_load_dwordx16 s[4:19], s[0:1], 0
s_load_dwordx8 s[20:27], s[0:1], 64
s_waitcnt lgkmcnt(0)
"""
def end(name, nv=64):
    return f"L_end_{name}:\ns_endpgm\n" + kd(name, nv)
def dot(name, K, abase, astep, bbase, bstep, acc, va="v10", vb="v11"):
    return f"""v_mov_b32 {acc}, 0
v_mov_b32 v12, 0
v_mov_b32 v13, 0
s_mov_b32 s30, 0
L_dot_{name}:
global_load_short_d16_hi v12, {va}, {abase}
global_load_short_d16_hi v13, {vb}, {bbase}
v_add_u32 {va}, {astep}, {va}
v_add_u32 {vb}, {bstep}, {vb}
s_add_u32 s30, s30, 1
s_cmp_lt_u32 s30, {K}
s_waitcnt vmcnt(0)
v_fmac_f32 {acc}, v12, v13
s_cbranch_scc1 L_dot_{name}
"""
def sigmoid(d, s):
    return f"""v_mul_f32 {d}, 0xbfb8aa3b, {s}
v_exp_f32 {d}, {d}
s_nop 0
v_add_f32 {d}, 1.0, {d}
v_rcp_f32 {d}, {d}
s_nop 0
"""
def argmax(name):
    return f"""v_mov_b32 v20, 0xff800000
v_mov_b32 v21, 0
v_mov_b32 v22, {R}
s_mov_b32 s30, 0
L_am_{name}:
global_load_dword v23, v22, s[26:27]
v_mov_b32 v24, s30
v_add_u32 v22, 4, v22
s_add_u32 s30, s30, 1
s_cmp_lt_u32 s30, 2048
s_waitcnt vmcnt(0)
v_cmp_gt_f32 vcc, v23, v20
s_nop 1
v_cndmask_b32 v20, v20, v23, vcc
v_cndmask_b32 v21, v21, v24, vcc
s_cbranch_scc1 L_am_{name}
"""
def gen(probe_launch="", probe_code=""):
    top = probe_launch
    top += "; @launch kernel=qkv_kernel grid=(30720,1,1) block=(128,1,1) lds=0\n"
    top += "; @launch kernel=rg_kernel grid=(32,1,1) block=(64,1,1) lds=0\n"
    top += "; @launch kernel=att_kernel grid=(1024,1,1) block=(64,1,1) lds=0\n"
    top += "; @launch kernel=h_kernel grid=(27,1,1) block=(64,1,1) lds=0\n"
    top += "; @launch kernel=y_kernel grid=(10,1,1) block=(64,1,1) lds=0\n"
    top += "; @launch kernel=fin_kernel grid=(10240,1,1) block=(128,1,1) lds=0\n"
    s = top + HDR + probe_code
    s += start("qkv_kernel", 30720)
    s += f"""s_mul_hi_u32 s28, s2, {(1<<32)//15+1}
s_mul_i32 s29, s28, 15
s_sub_u32 s29, s2, s29
s_mul_i32 s31, s28, 1280
v_mov_b32 v10, s31
s_lshl_b32 s29, s29, 8
v_lshlrev_b32 v11, 1, v0
v_add_u32 v11, s29, v11
s_mul_i32 s31, s28, 3840
v_add_u32 v14, s31, v11
"""
    s += dot("qkv", 640, "s[4:5]", 2, "s[6:7]", 3840, "v15")
    s += "v_cvt_pk_bf16_f32 v15, v15, v15\nglobal_store_short v14, v15, s[26:27]\n"
    s += end("qkv_kernel")
    s += start("rg_kernel", 32)
    s += "s_lshl_b32 s28, s2, 6\nv_add_u32 v1, s28, v0\nv_mul_u32_u24 v10, 1280, v1\nv_mov_b32 v11, 0\n"
    s += dot("r", 640, "s[4:5]", 2, "s[12:13]", 2, "v15")
    s += "v_mul_u32_u24 v10, 1280, v1\nv_mov_b32 v11, 0\n"
    s += dot("g", 640, "s[4:5]", 2, "s[20:21]", 2, "v16")
    s += sigmoid("v16", "v16")
    s += f"v_lshlrev_b32 v2, 2, v1\nv_add_u32 v3, {R}, v2\nv_add_u32 v4, {G}, v2\nglobal_store_dword v3, v15, s[26:27]\nglobal_store_dword v4, v16, s[26:27]\n"
    s += end("rg_kernel")
    s += start("att_kernel", 1024)
    s += "s_lshl_b32 s28, s2, 6\nv_add_u32 v1, s28, v0\nv_lshrrev_b32 v2, 5, v1\nv_and_b32 v3, 31, v1\nv_mul_u32_u24 v3, 40, v3\n"
    for w in range(8):
        s += f"v_subrev_u32 v4, {2*w}, v2\nv_max_i32 v4, 0, v4\nv_mul_u32_u24 v{40+w}, 3840, v4\nv_add_u32 v{40+w}, v{40+w}, v3\n"
        s += f"v_mov_b32 v10, v40\nv_add_u32 v11, 1280, v{40+w}\n"
        s += dot(f"l{w}", 20, "s[26:27]", 2, "s[26:27]", 2, f"v{30+w}")
        s += f"v_mul_f32 v{30+w}, {20**-0.5*1.4426950408889634!r}, v{30+w}\nv_mov_b32 v5, 0xff800000\nv_cmp_le_u32 vcc, {2*w}, v2\ns_nop 1\nv_cndmask_b32 v{30+w}, v5, v{30+w}, vcc\n"
    s += "v_mov_b32 v6, v30\n" + "".join(f"v_max_f32 v6, v6, v{30+w}\n" for w in range(1, 8))
    s += "v_mov_b32 v7, 0\n" + "".join(f"v_sub_f32 v{30+w}, v{30+w}, v6\nv_exp_f32 v{30+w}, v{30+w}\ns_nop 0\nv_add_f32 v7, v7, v{30+w}\n" for w in range(8))
    s += f"v_rcp_f32 v7, v7\nv_mul_u32_u24 v8, 1280, v2\nv_add_u32 v8, v8, v3\nv_add_u32 v8, {O}, v8\nv_mov_b32 v12, 0\n"
    for d in range(20):
        s += "v_mov_b32 v15, 0\n"
        for w in range(8):
            s += f"global_load_short_d16_hi v12, v{40+w}, s[26:27] offset:{2560+2*d}\ns_waitcnt vmcnt(0)\nv_fmac_f32 v15, v12, v{30+w}\n"
        s += f"v_mul_f32 v15, v15, v7\nv_cvt_pk_bf16_f32 v15, v15, v15\nglobal_store_short v8, v15, s[26:27] offset:{2*d}\n"
    s += end("att_kernel")
    s += start("h_kernel", 27)
    s += argmax("h")
    s += "s_lshl_b32 s28, s2, 6\nv_add_u32 v1, s28, v0\nv_mul_u32_u24 v10, 1280, v21\nv_lshlrev_b32 v11, 1, v1\n"
    s += dot("hg", 640, "s[4:5]", 2, "s[14:15]", 3456, "v15")
    s += "v_mul_u32_u24 v10, 1280, v21\nv_lshlrev_b32 v11, 1, v1\n"
    s += dot("hu", 640, "s[4:5]", 2, "s[16:17]", 3456, "v16")
    s += sigmoid("v17", "v15")
    s += f"v_mul_f32 v17, v17, v15\nv_mul_f32 v17, v17, v16\nv_cvt_pk_bf16_f32 v17, v17, v17\nv_lshlrev_b32 v2, 1, v1\nv_add_u32 v2, {H}, v2\nglobal_store_short v2, v17, s[26:27]\n"
    s += end("h_kernel")
    s += start("y_kernel", 10)
    s += argmax("y")
    s += f"s_lshl_b32 s28, s2, 6\nv_add_u32 v1, s28, v0\nv_mov_b32 v10, {H}\nv_lshlrev_b32 v11, 1, v1\n"
    s += dot("y", 1728, "s[26:27]", 2, "s[18:19]", 1280, "v15")
    s += sigmoid("v17", "v20")
    s += f"v_mul_f32 v15, v15, v17\nv_lshlrev_b32 v2, 2, v1\nv_add_u32 v2, {Y}, v2\nglobal_store_dword v2, v15, s[26:27]\nv_mov_b32 v2, {Y+4096}\nglobal_store_dword v2, v21, s[26:27]\n"
    s += end("y_kernel")
    s += start("fin_kernel", 10240)
    s += f"""s_mul_hi_u32 s28, s2, {(1<<32)//5+1}
s_mul_i32 s29, s28, 5
s_sub_u32 s29, s2, s29
s_mul_i32 s31, s28, 1280
s_add_u32 s32, s31, {O}
v_mov_b32 v10, s32
s_lshl_b32 s29, s29, 8
v_lshlrev_b32 v11, 1, v0
v_add_u32 v11, s29, v11
v_add_u32 v14, s31, v11
v_lshlrev_b32 v20, 1, v11
v_add_u32 v20, {Y}, v20
v_mov_b32 v21, {Y+4096}
s_lshl_b32 s33, s28, 2
s_add_u32 s33, s33, {G}
v_mov_b32 v22, s33
v_mov_b32 v23, 0
global_load_dword v20, v20, s[26:27]
global_load_dword v21, v21, s[26:27]
global_load_dword v22, v22, s[26:27]
global_load_short_d16_hi v23, v14, s[4:5]
"""
    s += dot("fin", 640, "s[26:27]", 2, "s[8:9]", 1280, "v15")
    s += """v_cmp_eq_u32 vcc, s28, v21
s_nop 1
v_cndmask_b32 v20, 0, v20, vcc
v_add_f32 v23, v23, v20
v_sub_f32 v24, 1.0, v22
v_mul_f32 v23, v23, v24
v_fmac_f32 v23, v22, v15
v_cvt_pk_bf16_f32 v15, v23, v23
global_store_short v14, v15, s[22:23]
"""
    s += end("fin_kernel")
    return s
if __name__ == "__main__":
    open(sys.argv[1], "w").write(gen())
```

```python
import sys
from naive_gen import *
AMP = 1000
def spin():
    return f"""s_mul_i32 s40, s40, {AMP}
s_min_u32 s40, s40, 3000000
s_memrealtime s[34:35]
s_waitcnt lgkmcnt(0)
L_spin:
s_sleep 32
s_memrealtime s[36:37]
s_waitcnt lgkmcnt(0)
s_sub_u32 s38, s36, s34
s_cmp_lt_u32 s38, s40
s_cbranch_scc1 L_spin
"""
def record():
    return """v_mov_b32 v4, s40
s_lshl_b32 s41, s2, 2
s_add_u32 s41, s41, 0x8000000
v_mov_b32 v3, s41
global_store_dword v3, v4, s[26:27]
"""
def probe(kind):
    launch = "; @launch kernel=probe_kernel grid=(256,1,1) block=(512,1,1) lds=81920\n"
    s = start("probe_kernel", 256)
    if kind == 'none':
        s += "s_mov_b32 s40, 0\n"
    elif kind in ('ffn', 'ffn1'):
        s += "s_lshl_b32 s28, s2, 13\nv_lshlrev_b32 v3, 4, v0\nv_add_u32 v3, s28, v3\n"
        s += "s_memrealtime s[34:35]\ns_waitcnt lgkmcnt(0)\n"
        s += "global_load_dwordx4 v[8:11], v3, s[14:15]\n"
        if kind == 'ffn': s += "global_load_dwordx4 v[12:15], v3, s[16:17]\nglobal_load_dwordx4 v[16:19], v3, s[18:19]\n"
        s += "s_waitcnt vmcnt(0)\ns_barrier\ns_memrealtime s[36:37]\ns_waitcnt lgkmcnt(0)\ns_sub_u32 s40, s36, s34\n"
    elif kind == 'xw':
        s += "s_lshl_b32 s28, s2, 13\nv_lshlrev_b32 v3, 4, v0\nv_add_u32 v3, s28, v3\n"
        s += "s_memrealtime s[34:35]\ns_waitcnt lgkmcnt(0)\n"
        s += "global_load_dwordx4 v[8:11], v3, s[4:5]\nglobal_load_dwordx4 v[12:15], v3, s[6:7]\nglobal_load_dwordx4 v[16:19], v3, s[10:11]\n"
        s += "s_waitcnt vmcnt(0)\ns_barrier\ns_memrealtime s[36:37]\ns_waitcnt lgkmcnt(0)\ns_sub_u32 s40, s36, s34\n"
    elif kind == 'skew':
        s = s.replace("s_load_dwordx16", "s_memrealtime s[34:35]\ns_load_dwordx16")
        s += """s_not_b32 s36, s34
v_mov_b32 v3, 0
v_mov_b32 v4, s36
v_mov_b32 v5, 1
s_mov_b32 s39, 0
v_cmp_eq_u32 vcc, 0, v0
s_and_saveexec_b64 s[42:43], vcc
s_cbranch_execz L_w
global_atomic_umax v3, v4, s[24:25] sc1
s_waitcnt vmcnt(0)
global_atomic_add v3, v5, s[24:25] offset:4 sc1
L_w:
s_mov_b64 exec, -1
L_p:
global_load_dwordx2 v[6:7], v3, s[24:25] sc1
s_waitcnt vmcnt(0)
v_readfirstlane_b32 s37, v7
v_readfirstlane_b32 s38, v6
s_add_u32 s39, s39, 1
s_cmp_gt_u32 s39, 100000
s_cbranch_scc1 L_q
s_cmp_lt_u32 s37, 256
s_cbranch_scc1 L_p
L_q:
s_not_b32 s38, s38
s_sub_u32 s40, s34, s38
"""
    elif kind == 'code':
        s += """s_mov_b32 s30, 0
s_memrealtime s[34:35]
L_loop:
.rept 2048
v_fma_f32 v5, v6, v7, v8
.endr
s_cmp_eq_u32 s30, 1
s_cbranch_scc1 L_done
s_memrealtime s[36:37]
s_mov_b32 s30, 1
s_branch L_loop
L_done:
s_memrealtime s[38:39]
s_waitcnt lgkmcnt(0)
s_sub_u32 s40, s36, s34
s_sub_u32 s41, s38, s36
s_sub_i32 s40, s40, s41
s_max_i32 s40, s40, 0
"""
    elif kind == 'karg':
        s = s.replace("s_load_dwordx16", "s_memrealtime s[34:35]\ns_waitcnt lgkmcnt(0)\ns_load_dwordx16")
        s += "s_memrealtime s[36:37]\ns_waitcnt lgkmcnt(0)\ns_sub_u32 s40, s36, s34\n"
    s += record() + spin()
    s += end("probe_kernel")
    return launch, s
if __name__ == "__main__":
    for k in ['none', 'ffn', 'ffn1', 'xw', 'skew', 'code', 'karg']:
        open(f"probe_{k}.s", "w").write(gen(*probe(k)))
```

```python
import re

def _regs(tok):
    tok = tok.strip()
    tok = re.sub(r"^-|^\||\|$|^abs\(|\)$|^neg\(", "", tok)
    m = re.fullmatch(r"([vsa])(\d+)", tok)
    if m: return [(m.group(1), int(m.group(2)))]
    m = re.fullmatch(r"([vsa])\[(\d+):(\d+)\]", tok)
    if m: return [(m.group(1), n) for n in range(int(m.group(2)), int(m.group(3))+1)]
    if tok in ("vcc", "vcc_lo", "vcc_hi"): return [("s", "vcc")]
    if tok in ("exec", "exec_lo", "exec_hi"): return [("s", "exec")]
    if tok == "m0": return [("s", "m0")]
    return []

TRANS = ("v_exp_f32", "v_log_f32", "v_rcp_f32", "v_rsq_f32", "v_sqrt_f32", "v_sin_f32", "v_cos_f32", "v_rcp_iflag_f32")

class Ins:
    def __init__(self, text):
        self.text = text
        t = text.split(";")[0].strip()
        self.is_label = t.endswith(":")
        self.is_dir = t.startswith(".") and not self.is_label
        self.op = "" if (self.is_label or self.is_dir or not t) else t.split()[0]
        rest = t[len(self.op):] if self.op else ""
        ops, depth, cur = [], 0, ""
        for ch in rest:
            if ch in "[(": depth += 1
            if ch in "])": depth -= 1
            if ch == "," and depth == 0: ops.append(cur); cur = ""
            else: cur += ch
        ops.append(cur)
        last = ops[-1].split()
        self.mods = last[1:] if last else []
        if last: ops[-1] = last[0]
        self.ops = [o.strip() for o in ops if o.strip()]
        op = self.op
        self.mfma = op.startswith("v_mfma")
        self.valu = op.startswith("v_") and not self.mfma
        self.salu = op.startswith("s_") and not op.startswith(("s_load", "s_buffer", "s_waitcnt", "s_nop", "s_barrier", "s_mem", "s_cbranch", "s_branch", "s_endpgm", "s_sleep", "s_setprio"))
        self.vmem = op.startswith(("buffer_", "global_"))
        self.ds = op.startswith("ds_")
        self.dpp = "_dpp" in op
        self.trans = op.split("_e32")[0].split("_e64")[0] in TRANS
        self.perm = op.startswith("v_permlane")
        self.dot = op.startswith("v_dot")
        self.lds_dma = self.vmem and ("lds" in self.mods or "_lds_" in op)
        R = [_regs(o) for o in self.ops]
        self.w, self.r = [], []
        self.srcC = []
        if self.mfma:
            self.w = R[0]; self.r = R[1] + R[2] + R[3]; self.srcAB = R[1] + R[2]; self.srcC = R[3]
        elif self.valu:
            if op.startswith("v_cmp"):
                self.w = R[0]; self.r = sum(R[1:], [])
                if op.startswith("v_cmpx"): self.w = self.w + [("s", "exec")]
            elif op.startswith(("v_swap", "v_permlane16_swap", "v_permlane32_swap")):
                self.w = R[0] + R[1]; self.r = R[0] + R[1]
            elif op.startswith(("v_add_co", "v_sub_co", "v_addc_co", "v_subb_co", "v_subrev_co")):
                self.w = R[0] + R[1]; self.r = sum(R[2:], [])
            else:
                self.w = R[0]; self.r = sum(R[1:], [])
                if op.startswith(("v_fmac", "v_dot2c", "v_writelane")) or self.dpp: self.r = self.r + R[0]
        elif self.vmem:
            if "load" in op and not self.lds_dma:
                self.w = R[0]; self.r = sum(R[1:], [])
            else:
                self.r = sum(R, [])
                if "atomic" in op and "sc0" in self.mods: self.w = R[0]
            self.store_data = []
            if "store" in op and ("x4" in op or "x3" in op):
                self.store_data = R[0] if op.startswith("buffer") else R[1]
        elif self.ds:
            if op.startswith(("ds_read", "ds_bpermute", "ds_permute", "ds_swizzle")) or "_rtn" in op:
                self.w = R[0]; self.r = sum(R[1:], [])
            else:
                self.r = sum(R, [])
        elif self.salu:
            if op.startswith(("s_cmp", "s_bitcmp")): self.r = sum(R, [])
            else:
                self.w = R[0] if R else []; self.r = sum(R[1:], [])
                if "saveexec" in op: self.w = self.w + [("s", "exec")]
        elif op.startswith(("s_load", "s_mem")):
            self.w = R[0] if R else []; self.r = sum(R[1:], [])
        self.states = 0 if (self.is_label or self.is_dir or not op) else 1
        if op == "s_nop": self.states = int(self.ops[0], 0) + 1

def need(p, c):
    n = 0
    pw, cr, cw = set(p.w), set(c.r), set(c.w)
    vw = {x for x in pw if x[0] in "va"}
    sw = {x for x in pw if x[0] == "s"}
    if p.mfma:
        passes = 8 if "32x32" in p.op else 4
        big = {4: 8, 8: 12}[passes]; ovl = {4: 6, 8: 10}[passes]; war = {4: 3, 8: 7}[passes]
        if c.mfma:
            if vw & set(c.srcAB): n = max(n, big)
            if vw & set(c.srcC) and not (p.w == c.srcC and p.op == c.op): n = max(n, ovl)
            if vw & cw and not (p.w == c.w and p.op == c.op): n = max(n, ovl)
        elif c.valu or c.vmem or c.ds:
            if vw & (cr | cw): n = max(n, big)
        if c.valu and set(p.srcC) & cw: n = max(n, war)
    if p.valu:
        if c.mfma and vw & cr: n = max(n, 3 if p.dot else 2)
        if c.mfma and ("s", "exec") in sw: n = max(n, 4)
        if c.perm and vw & cr: n = max(n, 2)
        if c.dpp and vw & cr: n = max(n, 2)
        if c.dpp and ("s", "exec") in sw: n = max(n, 5)
        if p.trans and c.valu and vw & cr: n = max(n, 1)
        if p.dot and (c.valu or c.vmem or c.ds) and vw & (cr | cw):
            same = c.op == p.op and not (vw & set(sum([_regs(o) for o in c.ops[1:3]], [])))
            if not same: n = max(n, 3)
        if c.op.startswith(("v_readlane", "v_readfirstlane")) and vw & cr: n = max(n, 1)
        if c.valu and sw & cr: n = max(n, 4 if c.op.startswith(("v_readlane", "v_writelane")) else 2)
        if c.valu and ("s", "vcc") in sw and c.op.startswith(("v_cndmask", "v_addc", "v_subb")): n = max(n, 2)
        if c.vmem and sw & cr: n = max(n, 5)
        if (c.salu or c.op.startswith(("s_load", "s_cbranch_vcc"))) and (sw & cr or (c.op.startswith("s_cbranch_vcc") and ("s", "vcc") in sw)): n = max(n, 1)
        if ("s", "exec") in sw and (c.perm or c.op.startswith(("v_readlane", "v_readfirstlane", "v_writelane"))): n = max(n, 4)
    if p.salu and ("s", "m0") in sw and c.lds_dma: n = max(n, 1)
    if p.vmem and getattr(p, "store_data", None) and set(p.store_data) & cw: n = max(n, 2)
    return n

class Asm:
    def __init__(self):
        self.lines = []
    def __call__(self, text):
        for l in text.split("\n"):
            l = l.strip()
            if l: self.lines.append(l)
    def label(self, name): self.lines.append(name + ":")
    def render(self, report=False):
        out, hist = [], []
        pads = 0
        for l in self.lines:
            c = Ins(l)
            if c.states:
                dist, pad = 0, 0
                for p in reversed(hist):
                    pad = max(pad, need(p, c) - dist)
                    dist += p.states
                    if dist > 20: break
                if pad > 0:
                    pads += pad
                    nop = Ins(f"s_nop {pad-1}")
                    out.append("    " + nop.text); hist.append(nop)
                hist.append(c)
                if c.op in ("s_branch", "s_endpgm", "s_setpc_b64"): hist = []
                hist = hist[-24:]
            out.append(l if (c.is_label or c.is_dir) else "    " + l)
        if report: print("wait states padded:", pads)
        return "\n".join(out) + "\n"
```

```python
import sys
from asmlib import Asm

NAME = "gated_mix__sliding_local_dilated__moe_arch_mod__prompt_kernel"

EPOCH = 0x0
PFLAG = 0x1000
OFLAG = 0x2000
RMAX = 0x3000
WOFLAG = 0x3800
GG = 0x4000
YY = 0x10000
OO = 0x40000
PW = 0x2C0000
PWO = 0x4A0000
WS_SIZE = 0x600000
STAMP = 0x8000000
OOB = 0x80000000

XB = 61440
STG = 46080
WOZ = 1024
L_CNT = 0
L_SEL = 16
L_Y = 64

sWAVE, sXCD, sI, sRB, sHG, sP, sB, sTAG, sRB2, sCB = [f"s{n}" for n in range(28, 38)]
SX, SW, SWS, SOUT, SWO, SG, SU, SD = [f"s[{n}:{n+3}]" for n in range(40, 72, 4)]
SC = 20 ** -0.5 * 1.4426950408889634


def f2u(x):
    import struct
    return hex(struct.unpack("<I", struct.pack("<f", x))[0])


def vr(b, n):
    return f"v[{b}:{b+n-1}]"


class G:
    def __init__(self, diag=False, opt=None):
        self.a = Asm()
        self.diag = diag
        self.o = dict(poll_at=1, ahead=2, bw_step=16, out_aux="", code_lines=192)
        self.o.update(opt or {})
        self.nlab = 0

    def lab(self, p="L"):
        self.nlab += 1
        return f"{p}_{self.nlab}"

    def stamp(self, k):
        if self.diag:
            self.a(f"s_memrealtime s[{72+2*k}:{73+2*k}]")

    def end(self):
        a = self.a
        if self.diag:
            a("s_branch L_diag_end")
        else:
            a("s_endpgm")

    def tag(self):
        self.a(f"""s_waitcnt lgkmcnt(0)
s_mul_i32 {sTAG}, s39, 1664525
s_add_u32 {sTAG}, {sTAG}, 1013904223""")

    def div10(self, q, r, p, tmp):
        self.a(f"""v_mul_u32_u24 {q}, 6554, {p}
v_lshrrev_b32 {q}, 16, {q}
v_mul_u32_u24 {tmp}, 10, {q}
v_sub_u32 {r}, {p}, {tmp}""")

    def div80(self, q, r, p, tmp):
        self.a(f"""v_mul_u32_u24 {q}, 6554, {p}
v_lshrrev_b32 {q}, 19, {q}
v_mul_u32_u24 {tmp}, 80, {q}
v_sub_u32 {r}, {p}, {tmp}""")

    def prologue(self):
        a = self.a
        a(f""".globl {NAME}
.p2align 8
.type {NAME},@function
{NAME}:
s_cmp_lt_u32 s2, 256
s_cbranch_scc1 L_start
s_endpgm
L_start:
s_load_dwordx2 s[48:49], s[0:1], 88
s_load_dwordx2 s[44:45], s[0:1], 8
s_load_dwordx2 s[40:41], s[0:1], 0""")
        self.stamp(0)
        a(f"""s_getpc_b64 s[4:5]
v_lshrrev_b32 v1, 6, v0
v_lshlrev_b32 v2, 7, v0
v_and_b32 v0, 63, v0
v_readfirstlane_b32 {sWAVE}, v1
s_load_dwordx2 s[56:57], s[0:1], 16
s_load_dwordx2 s[12:13], s[0:1], 32
s_load_dwordx2 s[60:61], s[0:1], 40
s_load_dwordx2 s[64:65], s[0:1], 48
s_load_dwordx2 s[68:69], s[0:1], 56
s_load_dwordx2 s[20:21], s[0:1], 64
s_load_dwordx2 s[52:53], s[0:1], 72
s_sub_u32 s6, {sWAVE}, 4
s_cmp_ge_u32 s6, {self.o['code_lines']//64}
s_cbranch_scc1 L_nopf
v_subrev_u32 v2, {256*128}, v2
global_load_dword v255, v2, s[4:5]
L_nopf:
s_mov_b32 s3, 100000
s_mov_b32 s42, {2048*1280}
s_mov_b32 s43, 0x20000
s_mov_b32 s46, {640*3840}
s_mov_b32 s47, 0x20000
s_mov_b32 s50, {WS_SIZE}
s_mov_b32 s51, 0x20000
s_mov_b32 s54, {2048*1280}
s_mov_b32 s55, 0x20000
s_mov_b32 s58, {640*1280}
s_mov_b32 s59, 0x20000
s_mov_b32 s62, {640*3456}
s_mov_b32 s63, 0x20000
s_mov_b32 s66, {640*3456}
s_mov_b32 s67, 0x20000
s_mov_b32 s70, {1728*1280}
s_mov_b32 s71, 0x20000
s_and_b32 {sXCD}, s2, 7
s_lshr_b32 {sI}, s2, 3
s_and_b32 s6, {sXCD}, 1
s_lshl_b32 s6, s6, 2
s_and_b32 s7, {sI}, 3
s_add_u32 {sHG}, s6, s7
s_lshr_b32 s6, {sXCD}, 1
s_lshr_b32 s7, {sI}, 2
s_mul_i32 {sRB}, s6, 7
s_add_u32 {sRB}, {sRB}, s7
s_lshr_b32 {sP}, {sXCD}, 2
s_mul_i32 s8, {sP}, 14
s_sub_u32 {sB}, {sRB}, s8
s_lshl_b32 s38, s6, 3
s_add_u32 s38, s38, s7
s_mul_i32 s8, {sI}, 37
s_lshr_b32 s8, s8, 8
s_mul_i32 s9, s8, 7
s_sub_u32 {sCB}, {sI}, s9
s_lshl_b32 {sRB2}, {sXCD}, 2
s_add_u32 {sRB2}, {sRB2}, s8
s_cmp_eq_u32 {sWAVE}, 7
s_cbranch_scc1 L_aux
s_cmp_ge_u32 {sI}, 28
s_cbranch_scc1 L_spare
s_cmp_ge_u32 {sWAVE}, 5
s_cbranch_scc1 L_ldr_early""")
        a(f"""s_mul_i32 s6, {sB}, 73
s_lshl_b32 s7, {sWAVE}, 3
s_add_u32 s6, s6, s7
s_mul_i32 s6, s6, 2560
s_mul_i32 s7, {sP}, 1280
s_add_u32 s6, s6, s7
s_and_b32 s7, {sWAVE}, 1
s_lshl_b32 s7, s7, 2
v_lshrrev_b32 v2, 3, v0
v_mul_u32_u24 v2, 2560, v2
v_lshrrev_b32 v3, 4, v0
v_add_u32 v3, s7, v3
v_and_b32 v4, 7, v0
v_xor_b32 v3, v3, v4
v_lshl_add_u32 v2, v3, 4, v2
v_add_u32 v2, s6, v2
v_xor_b32 v3, 64, v2
v_add_u32 v3, {40*2560}, v3
s_mul_i32 s8, {sHG}, 10
s_lshr_b32 s8, s8, 3
s_lshl_b32 s9, {sWAVE}, 10
s_add_u32 s9, s9, {XB}
s_mov_b32 s10, 10
s_waitcnt lgkmcnt(0)
s_load_dword s39, s[48:49], {EPOCH}
L_xl:
s_mul_i32 s6, s8, 10240
s_add_u32 m0, s6, s9
s_lshl_b32 s7, s8, 7
buffer_load_dwordx4 v2, {SX}, s7 offen lds
s_add_u32 m0, m0, 5120
s_add_u32 s8, s8, 1
buffer_load_dwordx4 v3, {SX}, s7 offen lds
s_cmp_eq_u32 s8, 10
s_cselect_b32 s8, 0, s8
s_sub_u32 s10, s10, 1
s_cmp_lg_u32 s10, 0
s_cbranch_scc1 L_xl
s_cmp_eq_u32 {sWAVE}, 4
s_cbranch_scc1 L_ldr""")

    def compute(self):
        a = self.a
        o = self.o
        aQ = lambda t: 16 + 4 * t
        aK = lambda t: 36 + 4 * t
        aV = lambda t: 56 + 4 * t
        aX = lambda t: 76 + 4 * t
        acc = [aQ, aK, aV, aX]
        Xb = lambda s, t: 96 + 20 * (s & 1) + 4 * t
        Wp = lambda s, tau: 136 + 16 * (s & 3) + 4 * tau
        Wd = lambda s, tau: 200 + 16 * (s & 1) + 4 * tau
        Qop = lambda t: 200 + 4 * t
        Kop = lambda t: 220 + 4 * t
        BC, BP, CONE, EE = 240, 244, 248, 252
        self.tag()
        self.stamp(1)
        a("s_barrier")
        a(f"""v_lshrrev_b32 v14, 4, v0
v_and_b32 v15, 15, v0
v_lshrrev_b32 v1, 1, v15
v_xor_b32 v1, v1, v14
v_lshlrev_b32 v1, 4, v1
v_lshl_add_u32 v1, v15, 7, v1
v_add_u32 v1, {XB}, v1
v_xor_b32 v2, 64, v1
s_mul_i32 s6, {sWAVE}, 40
v_lshrrev_b32 v3, 2, v0
v_mul_u32_u24 v3, 160, v3
v_add_u32 v3, s6, v3
v_and_b32 v12, 3, v0
v_min_u32 v13, 2, v12
v_mul_u32_u24 v13, 5120, v13
v_add3_u32 v4, v3, v13, 32
v_lshl_add_u32 v3, v12, 3, v3
v_lshlrev_b32 v5, 4, v0
v_mul_u32_u24 v6, 12, v14
v_add_u32 v6, v6, v15
v_lshlrev_b32 v6, 4, v6
v_mov_b32 v13, {hex(OOB)}
v_cmp_gt_u32 vcc, 12, v15
v_cndmask_b32 v6, v13, v6, vcc
v_cndmask_b32 v7, 0, -1, vcc
v_lshlrev_b32 v12, 2, v14
v_sub_u32 v12, v15, v12
v_mov_b32 v13, {f2u(-1e30)}""")
        for r in range(4):
            a(f"""v_subrev_u32 v254, {r}, v12
v_cmp_ge_u32 vcc, 7, v254
v_cndmask_b32 v{BC+r}, v13, 0, vcc
v_cmp_ge_i32 vcc, -9, v254
v_cndmask_b32 v{BP+r}, v13, 0, vcc""")
        a("v_mov_b32 v13, 0xffff")
        for j in range(2):
            a(f"""v_cmp_le_i32 vcc, {2*j}, v12
v_cndmask_b32 v{8+j}, 0, v13, vcc
v_cmp_le_i32 vcc, {2*j+1}, v12
v_cndmask_b32 v{8+j}, v{8+j}, -1, vcc
v_not_b32 v{10+j}, v{8+j}""")
        a(f"""v_and_b32 v12, 3, v0
v_cmp_eq_u32 vcc, 1, v12
v_cndmask_b32 v{CONE}, 0, 1.0, vcc
v_cndmask_b32 v{CONE+1}, 0, 1.0, vcc
v_cndmask_b32 v{CONE+2}, 0, 1.0, vcc
v_cndmask_b32 v{CONE+3}, 0, 1.0, vcc
v_mov_b32 v{EE}, 0
v_mov_b32 v{EE+1}, 0
s_mov_b32 s6, 0x3f80
s_mov_b32 s7, 0x3f800000
v_writelane_b32 v{EE}, s6, 32
v_writelane_b32 v{EE}, s7, 36
v_writelane_b32 v{EE+1}, s6, 40
v_writelane_b32 v{EE+1}, s7, 44
s_lshl_b32 s6, {sHG}, 7
s_add_u32 s6, s6, {PFLAG}
v_and_b32 v12, 31, v0
v_lshl_add_u32 v12, v12, 2, s6
s_lshl_b32 s14, {sHG}, 2
s_add_u32 s14, s14, {sWAVE}
s_mul_i32 s15, s14, 61440
s_add_u32 s15, s15, {PW}
s_mov_b32 s16, {f2u(SC)}
s_waitcnt vmcnt(0)""")
        self.stamp(2)
        a("s_barrier")
        self.stamp(3)

        xbase = [0]

        def xread(s):
            c = s >> 1
            out = []
            if c - xbase[0] >= 5:
                out.append("v_add_u32 v1, 51200, v1")
                out.append("v_add_u32 v2, 51200, v2")
                xbase[0] += 5
            for t in range(5):
                out.append(f"ds_read_b128 {vr(Xb(s,t),4)}, v{1+(s&1)} offset:{(c-xbase[0])*10240 + t*2048}")
            return out

        def trread(c):
            out = []
            for tau in range(4):
                base = c * 15360 + (tau * 5120 if tau < 3 else 0)
                ad = "v3" if tau < 3 else "v4"
                for j2 in range(2):
                    out.append(f"ds_read_b64_tr_b16 {vr(Wd(c,tau)+2*j2,2)}, {ad} offset:{base + 2560*j2}")
            return out

        def mf(s, tau, t, w):
            d = vr(acc[tau](t), 4)
            c = "0" if s == 0 else d
            x = vr(Xb(s, t), 4)
            ww = vr(w, 4)
            A, B = (x, ww) if tau == 2 else (ww, x)
            return f"v_mfma_f32_16x16x32_bf16 {d}, {A}, {B}, {c}"

        vm = []

        def pload(s, tau):
            vm.append(("W", s, tau))
            ad, off = ("v5", tau * 1024) if tau < 3 else ("v6", 3072)
            return f"buffer_load_dwordx4 {vr(Wp(s,tau),4)}, {ad}, {SWS}, s15 offen offset:{off} sc1"

        def vwait(name):
            n = len(vm) - 1 - vm.index(name)
            return f"s_waitcnt vmcnt({n})"

        def interleave(mfmas, fill, per=1):
            fill = list(fill)
            for m in mfmas:
                a(m)
                for _ in range(per):
                    if fill:
                        a(fill.pop(0))
            for f in fill:
                a(f)

        a(f"buffer_load_dword v13, v12, {SWS}, 0 offen sc1")
        for l in xread(0) + trread(0):
            a(l)
        for c in range(4):
            nx = xread(c + 1)
            a("s_waitcnt lgkmcnt(6)")
            interleave([mf(c, 0, t, Wd(c, 0)) for t in range(5)], nx)
            a("s_waitcnt lgkmcnt(9)")
            interleave([mf(c, 1, t, Wd(c, 1)) for t in range(5)], [])
            a("s_waitcnt lgkmcnt(5)")
            interleave([mf(c, 2, t, Wd(c, 2)) for t in range(5)],
                       [f"v_and_b32 v{Wd(c,3)+j}, v7, v{Wd(c,3)+j}" for j in range(4)])
            if c < 3:
                a("s_barrier")
                self.stamp(4 + c)
                for l in trread(c + 1):
                    a(l)
            interleave([mf(c, 3, t, Wd(c, 3)) for t in range(5)], [])
            if c + 1 == o['poll_at']:
                lp, ok = self.lab("L_pp"), self.lab("L_pok")
                a(f"""{lp}:
s_waitcnt vmcnt(0)
v_cmp_ne_u32 vcc, {sTAG}, v13
s_cbranch_vccz {ok}
buffer_load_dword v13, v12, {SWS}, 0 offen sc1
s_sub_u32 s3, s3, 1
s_cmp_gt_i32 s3, 0
s_cbranch_scc1 {lp}
{ok}:""")
                self.stamp(7)
                for s in range(4, 8):
                    for tau in range(4):
                        a(pload(s, tau))
                    a("s_add_u32 s15, s15, 3840")

        sh = []
        for t in range(5):
            sh += [f"v_mov_b32 v{Kop(t)+2}, 0", f"v_mov_b32 v{Kop(t)+3}, 0"]
        a(f"""s_mul_i32 s17, {sB}, 73
s_add_u32 s18, s17, 7
s_cmp_eq_u32 {sB}, 0
s_cselect_b32 s18, 0, s18
s_mul_i32 s19, {sP}, {64*20480}
s_add_u32 s19, s19, {OO}
s_lshr_b32 s6, s14, 1
s_lshl_b32 s6, s6, 10
s_and_b32 s7, s14, 1
s_lshl_b32 s8, s7, 9
s_add_u32 s6, s6, s8
s_add_u32 s22, s19, s6
s_lshr_b32 s6, s14, 3
s_add_u32 s6, s6, 16
s_lshl_b32 s6, s6, 10
s_lshr_b32 s8, s14, 1
s_and_b32 s8, s8, 3
s_lshl_b32 s8, s8, 8
s_lshl_b32 s7, s7, 3
s_add_u32 s6, s6, s8
s_add_u32 s6, s6, s7
s_add_u32 s23, s19, s6
s_mov_b32 s24, 20480
s_mov_b32 s25, {hex(OOB)}
s_and_b32 s6, {sRB2}, 15
s_lshl_b32 s6, s6, 6
s_lshl_b32 s7, {sWAVE}, 4
s_add_u32 s26, s6, s7
s_mul_i32 s6, {sP}, 1280
s_mul_i32 s7, {sCB}, 192
s_add_u32 s27, s6, s7
s_cmp_eq_u32 {sCB}, 6
s_cselect_b32 s10, 3, 4
s_cselect_b32 s11, 2, 4
s_mul_i32 s9, {sP}, 8448
s_add_u32 s9, s9, {GG}""")
        sh += f"""v_add_u32 v254, s17, v15
v_lshrrev_b32 v255, 4, v254
v_mul_u32_u24 v255, 20480, v255
v_and_b32 v3, 15, v254
v_lshl_add_u32 v255, v3, 4, v255
v_and_b32 v4, 1, v14
v_mad_u32_u24 v3, v4, s24, v255
v_lshrrev_b32 v7, 1, v14
v_lshl_add_u32 v3, v7, 8, v3
v_add_u32 v3, s22, v3
v_mad_u32_u24 v12, v14, s24, v255
v_add_u32 v12, s23, v12
v_add_u32 v13, s23, v255
v_add_u32 v13, {4*20480}, v13
v_add_u32 v7, {4*20480}, v3
v_mov_b32 v255, s25
v_lshl_add_u32 v4, v4, 12, v254
v_cmp_gt_u32 vcc, 960, v4
v_cndmask_b32 v7, v255, v7, vcc
v_cmp_le_u32 vcc, s18, v4
v_add_u32 v4, {2*20480}, v3
v_cndmask_b32 v3, v255, v3, vcc
v_lshl_add_u32 v254, v14, 12, v254
v_cmp_gt_u32 vcc, 960, v254
v_cndmask_b32 v13, v255, v13, vcc
v_cmp_le_u32 vcc, s18, v254
v_cndmask_b32 v12, v255, v12, vcc
v_add_u32 v254, s26, v15
v_mul_u32_u24 v15, 2560, v254
v_mad_u32_u24 v15, v14, 48, v15
v_add_u32 v15, s27, v15
v_lshl_add_u32 v254, v254, 3, s9
v_cmp_gt_u32 vcc, s10, v14
v_cmp_gt_u32 s[6:7], s11, v14
v_cndmask_b32 v14, v255, v15, vcc
v_cndmask_b32 v15, v255, v15, s[6:7]""".split("\n")

        XS, GQ = 136, 148
        for s in range(4, 20):
            last = s == 19
            if s == o['bw_step']:
                a("s_waitcnt lgkmcnt(0)")
                a("s_barrier")
                self.stamp(8)
            else:
                a("s_waitcnt lgkmcnt(0)")
            nx = xread(s + 1) if not last else []
            order = [0, 1, 2, 3] if not last else [3, 0, 1, 2]
            for n, tau in enumerate(order):
                if not last:
                    a(vwait(("W", s, tau)))
                elif n == 0:
                    a(vwait(("W", s, 3)))
                ms = [mf(s, tau, t, Wp(s, tau)) for t in range(5)]
                if last:
                    if n == 0:
                        fill = []
                    elif n == 1:
                        fill = [f"v_cvt_pk_bf16_f32 v{Qop(t)+2+j}, v{aX(t)+2*j}, v{aX(t)+2*j+1}" for t in range(5) for j in range(2)]
                    elif n == 2:
                        fill = [f"v_cvt_pk_bf16_f32 v{Qop(t)+j}, v{aQ(t)+2*j}, v{aQ(t)+2*j+1}" for t in range(5) for j in range(2)]
                    else:
                        fill = [f"v_cvt_pk_bf16_f32 v{Kop(t)+j}, v{aK(t)+2*j}, v{aK(t)+2*j+1}" for t in range(5) for j in range(2)]
                    interleave(ms, fill, per=2)
                elif n == 0:
                    interleave(ms, nx)
                else:
                    take, sh = sh[:5], sh[5:]
                    interleave(ms, take)
                if s + 4 <= 19:
                    a(pload(s + 4, tau))
                    if tau == 3:
                        a("s_add_u32 s15, s15, 3840")
            if s == 16:
                for m in range(3):
                    vm.append(("xs", m))
                    a(f"buffer_load_dwordx4 {vr(XS+4*m,4)}, v{14 + (m == 2)}, {SX}, 0 offen offset:{16*m}")
                vm.append(("g",))
                a(f"buffer_load_dwordx2 {vr(GQ,2)}, v254, {SWS}, 0 offen sc1")
        assert not sh
        self.stamp(9)

        VP = lambda t: 96 + 2 * t
        V4 = lambda t: 106 + 2 * t
        PQ = lambda t: 152 + 4 * t
        MX = lambda t: 172 + t
        NM = lambda t: 177 + t
        RC = lambda t: 182 + t
        O4 = lambda t: 128 + t
        OUT = [116, 118, 120, 122, 124]
        for t in range(5):
            for j in range(2):
                a(f"v_permlane16_swap_b32 v{Qop(t)+2+j}, v{Kop(t)+2+j}")
        ms = []
        for t in range(5):
            ms.append(f"v_mfma_f32_16x16x32_bf16 {vr(aQ(t),4)}, {vr(Kop(t),4)}, {vr(Qop(t),4)}, {vr(BC,4)}")
            if t:
                ms.append(f"v_mfma_f32_16x16x32_bf16 {vr(aK(t),4)}, {vr(Kop(t-1),4)}, {vr(Qop(t),4)}, {vr(BP,4)}")
        interleave(ms, [f"v_cvt_pk_bf16_f32 v{VP(t)+j}, v{aV(t)+2*j}, v{aV(t)+2*j+1}" for t in range(5) for j in range(2)])
        loc = []
        for t in range(5):
            if t:
                loc += [f"v_max_f32 v{aQ(t)+r}, v{aQ(t)+r}, v{aK(t)+r}" for r in range(4)]
            loc += [f"v_max3_f32 v{MX(t)}, v{aQ(t)}, v{aQ(t)+1}, v{aQ(t)+2}", f"v_max_f32 v{MX(t)}, v{MX(t)}, v{aQ(t)+3}"]
        interleave([f"v_mfma_f32_16x16x16_bf16 {vr(aX(t),4)}, {vr(Qop(t)+2,2)}, {vr(EE,2)}, {vr(CONE,4)}" for t in range(5)], loc, per=3)
        c4 = [f"v_cvt_pk_bf16_f32 v{V4(t)+j}, v{aX(t)+2*j}, v{aX(t)+2*j+1}" for t in range(5) for j in range(2)]
        T = 187
        a(f"""v_mov_b32 v{T}, v{MX(4)}
v_permlane16_swap_b32 v{MX(0)}, v{MX(1)}
v_permlane16_swap_b32 v{MX(2)}, v{MX(3)}
v_permlane16_swap_b32 v{MX(4)}, v{T}
v_max_f32 v{MX(0)}, v{MX(0)}, v{MX(1)}
v_max_f32 v{MX(2)}, v{MX(2)}, v{MX(3)}
v_max_f32 v{MX(4)}, v{MX(4)}, v{T}
v_mov_b32 v{T}, v{MX(4)}
v_permlane32_swap_b32 v{MX(0)}, v{MX(2)}
{c4[0]}
v_permlane32_swap_b32 v{MX(4)}, v{T}
v_max_f32 v{MX(0)}, v{MX(0)}, v{MX(2)}
v_max_f32 v{MX(4)}, v{MX(4)}, v{T}
v_mul_f32 v{NM(0)}, s16, v{MX(0)}
v_mul_f32 v{NM(2)}, s16, v{MX(0)}
v_mul_f32 v{NM(4)}, s16, v{MX(4)}
{c4[1]}
v_permlane32_swap_b32 v{NM(0)}, v{NM(2)}
v_mov_b32 v{NM(1)}, v{NM(0)}
v_mov_b32 v{NM(3)}, v{NM(2)}
{c4[2]}
{c4[3]}
v_permlane16_swap_b32 v{NM(0)}, v{NM(1)}
v_permlane16_swap_b32 v{NM(2)}, v{NM(3)}""")
        c4 = c4[4:]

        def fin(t):
            r = [f"v_rcp_f32 v{RC(t)}, v{aK(t)+1}"]
            return r

        def fin2(t):
            r = [f"v_mul_f32 v{aV(t)+j}, v{aV(t)+j}, v{RC(t)}" for j in range(4)]
            r += [f"v_mul_f32 v{O4(t)}, v{aK(t)}, v{RC(t)}"]
            r += [f"v_cvt_pk_bf16_f32 v{OUT[t]+j}, v{aV(t)+2*j}, v{aV(t)+2*j+1}" for j in range(2)]
            return r

        def ostore(q, ad):
            a(f"""v_permlane16_swap_b32 v{q}, v{q+2}
v_permlane16_swap_b32 v{q+1}, v{q+3}
buffer_store_dwordx4 {vr(q,4)}, {ad}, {SWS}, 0 offen sc1""")
            vm.append(("st", q))

        for t in range(5):
            for r in range(4):
                a(f"v_fma_f32 v{aQ(t)+r}, v{aQ(t)+r}, s16, -v{NM(t)}")
            for r in range(4):
                a(f"v_exp_f32 v{aQ(t)+r}, v{aQ(t)+r}")
            if t >= 1:
                a(fin(t - 1)[0])
            for l in c4[:2]:
                a(l)
            c4 = c4[2:]
            for j in range(2):
                a(f"v_cvt_pk_bf16_f32 v{PQ(t)+2+j}, v{aQ(t)+2*j}, v{aQ(t)+2*j+1}")
            if t:
                for j in range(2):
                    a(f"v_and_b32 v{PQ(t)+j}, v{10+j}, v{PQ(t)+2+j}")
                for j in range(2):
                    a(f"v_and_b32 v{PQ(t)+2+j}, v{8+j}, v{PQ(t)+2+j}")
                f2 = fin2(t - 1)
                a(f2[0]); a(f2[1])
                a(f"v_mfma_f32_16x16x32_bf16 {vr(aK(t),4)}, {vr(V4(t-1),4)}, {vr(PQ(t),4)}, 0")
                a(f2[2]); a(f2[3])
                a(f"v_mfma_f32_16x16x32_bf16 {vr(aV(t),4)}, {vr(VP(t-1),4)}, {vr(PQ(t),4)}, 0")
                for l in f2[4:]:
                    a(l)
                if t == 2:
                    ostore(OUT[0], "v3")
            else:
                a(f"v_mfma_f32_16x16x16_bf16 {vr(aK(0),4)}, {vr(V4(0),2)}, {vr(PQ(0)+2,2)}, 0")
                a(f"v_mfma_f32_16x16x16_bf16 {vr(aV(0),4)}, {vr(VP(0),2)}, {vr(PQ(0)+2,2)}, 0")
        ostore(OUT[2], "v4")
        a(f"""v_permlane16_swap_b32 v{O4(0)}, v{O4(1)}
v_permlane16_swap_b32 v{O4(2)}, v{O4(3)}
{fin(4)[0]}
v_cvt_pk_bf16_f32 v134, v{O4(0)}, v{O4(1)}
v_cvt_pk_bf16_f32 v135, v{O4(2)}, v{O4(3)}""")
        f2 = fin2(4)
        a(f2[4]); a(f2[0])
        a(f"""v_permlane32_swap_b32 v134, v135
buffer_store_dwordx2 v[134:135], v12, {SWS}, 0 offen sc1
v_permlane16_swap_b32 v{O4(4)}, v{T}""")
        vm.append(("st", 134))
        a(f2[1]); a(f2[2]); a(f2[3])
        a(f"v_cvt_pk_bf16_f32 v188, v{O4(4)}, v{T}")
        a(f2[5]); a(f2[6])
        a(f"""v_permlane32_swap_b32 v188, v189
buffer_store_dwordx2 v[188:189], v13, {SWS}, 0 offen sc1""")
        vm.append(("st", 188))
        ostore(OUT[4], "v7")
        self.stamp(10)

        BB = 40
        gl, gok = self.lab("L_gl"), self.lab("L_gok")
        a(vwait(("g",)))
        a(f"""{gl}:
v_cmp_ne_u32 vcc, {sTAG}, v{GQ+1}
s_cbranch_vccz {gok}
buffer_load_dwordx2 {vr(GQ,2)}, v254, {SWS}, 0 offen sc1
s_waitcnt vmcnt(0)
s_sub_u32 s3, s3, 1
s_cmp_gt_i32 s3, 0
s_cbranch_scc1 {gl}
{gok}:
v_mov_b32 v8, v{GQ}
v_sub_f32 v9, 1.0, v{GQ}""")
        for m in range(12):
            a(f"""v_lshlrev_b32 v{BB+2*m}, 16, v{XS+m}
v_and_b32 v{BB+2*m+1}, 0xffff0000, v{XS+m}
v_mul_f32 v{BB+2*m}, v9, v{BB+2*m}
v_mul_f32 v{BB+2*m+1}, v9, v{BB+2*m+1}""")
        nf = self.lab("L_nf")
        a(f"""s_max_u32 s6, s26, 7
s_sub_u32 s6, s6, 7
s_mul_i32 s6, s6, 898
s_lshr_b32 s6, s6, 16
s_add_u32 s7, s26, 8
s_mul_i32 s7, s7, 898
s_lshr_b32 s7, s7, 16
s_sub_u32 s7, s7, s6
s_lshl_b32 s7, s7, 7
s_mul_i32 s8, {sP}, 14
s_add_u32 s6, s6, s8
s_lshl_b32 s6, s6, 7
s_add_u32 s6, s6, {OFLAG}
v_bfe_u32 v10, v0, 3, 1
v_mul_u32_u24 v10, s7, v10
v_and_b32 v11, 7, v0
v_lshl_add_u32 v10, v11, 2, v10
v_add_u32 v10, s6, v10
v_add_u32 v1, {WOZ}, v5
v_add_u32 v2, {WOZ+61440}, v5
s_lshr_b32 s6, s26, 4
s_mul_i32 s6, s6, 20480
s_add_u32 s22, s19, s6
s_add_u32 s23, s22, 4096
s_add_u32 s24, s22, 8192
s_add_u32 s25, s22, 12288
s_add_u32 s27, s22, 16384
s_lshl_b32 s6, {sRB}, 7
s_lshl_b32 s7, {sHG}, 2
s_add_u32 s6, s6, s7
s_add_u32 s6, s6, {OFLAG}
v_mov_b32 v6, s6
v_mov_b32 v16, {L_CNT}
v_mov_b32 v17, 1
v_mov_b32 v18, {sTAG}
s_mov_b64 exec, 1
s_waitcnt vmcnt(0)
ds_add_rtn_u32 v17, v16, v17
s_waitcnt lgkmcnt(0)
v_readfirstlane_b32 s6, v17
s_cmp_lg_u32 s6, 3
s_cbranch_scc1 {nf}
buffer_store_dword v18, v6, {SWS}, 0 offen sc1
{nf}:
s_mov_b64 exec, -1""")
        self.stamp(11)
        a("s_barrier")
        self.stamp(12)
        AC = 16
        OR = lambda ks: 64 + 4 * (ks % 12)
        WR = lambda ks, j: 112 + 4 * ((ks * 6 + j) % 36)
        lds = []

        def wread(ks, j):
            f = ks * 6 + j
            lds.append((ks, j))
            return f"ds_read_b128 {vr(WR(ks,j),4)}, v{1 + (f >= 60)} offset:{(f % 60)*1024}"

        a(f"ds_read_b32 v3, v16 offset:{L_SEL}")
        a(f"buffer_load_dword v11, v10, {SWS}, 0 offen sc1")
        for ks in range(6):
            for j in range(6):
                a(wread(ks, j))
        pl, pk, nb = self.lab("L_op"), self.lab("L_ook"), self.lab("L_nb")
        a(f"""{pl}:
s_waitcnt vmcnt(0)
v_cmp_ne_u32 vcc, {sTAG}, v11
s_cbranch_vccz {pk}
buffer_load_dword v11, v10, {SWS}, 0 offen sc1
s_sub_u32 s3, s3, 1
s_cmp_gt_i32 s3, 0
s_cbranch_scc1 {pl}
{pk}:""")
        self.stamp(13)
        vm2 = []
        sob = ["s22", "s23", "s24", "s25", "s27"]

        def oload(ks):
            vm2.append(ks)
            return f"buffer_load_dwordx4 {vr(OR(ks),4)}, v5, {SWS}, {sob[ks>>2]} offen offset:{(ks&3)*1024} sc1"

        for ks in range(12):
            a(oload(ks))
        a("s_waitcnt lgkmcnt(0)")
        a("v_readfirstlane_b32 s14, v3")
        for ks in range(20):
            nv = len(vm2) - 1 - vm2.index(ks)
            nl = min(15, len(lds) - 1 - lds.index((ks, 5)))
            a(f"s_waitcnt vmcnt({nv})" + (f" lgkmcnt({nl})" if ks >= 6 else ""))
            for j in range(6):
                d = vr(AC + 4 * j, 4)
                a(f"v_mfma_f32_16x16x32_bf16 {d}, {vr(WR(ks,j),4)}, {vr(OR(ks),4)}, {'0' if ks == 0 else d}")
                if ks + 6 < 20:
                    a(wread(ks + 6, j))
            if ks + 12 < 20:
                a(oload(ks + 12))
        ny = self.lab("L_ny")
        a(f"""s_or_b32 s6, s2, {sWAVE}
s_cmp_lg_u32 s6, 0
s_cbranch_scc1 {nb}
v_mov_b32 v3, {EPOCH}
v_mov_b32 v4, {sTAG}
s_mov_b64 exec, 1
buffer_store_dword v4, v3, {SWS}, 0 offen sc1
s_mov_b64 exec, -1
{nb}:
s_cmp_lt_i32 s14, 0
s_cbranch_scc1 {ny}
s_barrier
s_lshr_b32 s6, s14, 4
s_cmp_lg_u32 s6, {sWAVE}
s_cbranch_scc1 {ny}
v_lshrrev_b32 v3, 4, v0
v_mul_u32_u24 v3, 96, v3
s_and_b32 s6, s14, 15
s_lshl_b32 s6, 0x10001, s6
s_mov_b32 s7, s6""")
        for j in range(6):
            a(f"ds_read_b128 {vr(112+4*j,4)}, v3 offset:{L_Y+16*j}")
        a("s_mov_b64 exec, s[6:7]\ns_waitcnt lgkmcnt(0)")
        for c in range(24):
            a(f"v_fmac_f32 v{BB+c}, v9, v{112+c}")
        a(f"s_mov_b64 exec, -1\n{ny}:\ns_nop 4")
        for m in range(3):
            for c in range(8 * m, 8 * m + 8):
                a(f"v_fma_f32 v{AC+c}, v{AC+c}, v8, v{BB+c}")
            for j in range(4):
                a(f"v_cvt_pk_bf16_f32 v{64+4*m+j}, v{AC+8*m+2*j}, v{AC+8*m+2*j+1}")
            a(f"buffer_store_dwordx4 {vr(64+4*m,4)}, v{14 + (m == 2)}, {SOUT}, 0 offen offset:{16*m} {o['out_aux']}")
        self.stamp(14)
        self.end()

    def wo_group(self, grp_sreg, poll_before=None):
        pass

    def wo_poll(self):
        a = self.a
        lp = self.lab("L_wp")
        a(f"""{lp}:
buffer_load_dword v4, v3, {SWS}, 0 offen sc1
s_waitcnt vmcnt(0)
v_cmp_ne_u32 vcc, {sTAG}, v4
s_cbranch_vccz {lp}_x
s_sub_u32 s3, s3, 1
s_cmp_gt_i32 s3, 0
s_cbranch_scc1 {lp}
{lp}_x:""")

    def wo_setup(self):
        self.a(f"""s_sub_u32 s6, {sWAVE}, 4
s_mul_i32 s7, s6, 20
s_lshl_b32 s8, {sCB}, 7
s_add_u32 s7, s7, s8
s_add_u32 s7, s7, {WOFLAG}
v_min_u32 v3, 4, v0
v_lshl_add_u32 v3, v3, 2, s7
v_lshlrev_b32 v2, 4, v0
s_mul_i32 s9, s6, 30720
s_mul_i32 s8, {sCB}, 122880
s_add_u32 s8, s8, s9
s_add_u32 s8, s8, {PWO}
s_add_u32 s9, s9, {WOZ}""")

    def wo_issue(self):
        a = self.a
        lp = self.lab("L_wi")
        a(f"""s_mov_b32 s10, 10
{lp}:
s_mov_b32 m0, s9
s_add_u32 s9, s9, 3072
buffer_load_dwordx4 v2, {SWS}, s8 offen sc1 lds
buffer_load_dwordx4 v2, {SWS}, s8 offen offset:1024 sc1 lds
buffer_load_dwordx4 v2, {SWS}, s8 offen offset:2048 sc1 lds
s_add_u32 s8, s8, 3072
s_sub_u32 s10, s10, 1
s_cmp_lg_u32 s10, 0
s_cbranch_scc1 {lp}""")

    def loaders(self):
        a = self.a
        o = self.o
        a(f"""L_ldr_early:
s_mul_i32 s6, s2, 18
v_min_u32 v2, 17, v0
v_add_u32 v2, s6, v2
v_min_u32 v2, 3839, v2
v_lshlrev_b32 v2, 7, v2
s_waitcnt lgkmcnt(0)
s_load_dword s39, s[48:49], {EPOCH}
s_cmp_lg_u32 {sWAVE}, 5
s_cbranch_scc1 L_ldr
buffer_load_dword v254, v2, {SW}, 0 offen
L_ldr:""")
        for n in range(5):
            a(f"v_add_u32 v2, {64*n}, v0")
            self.div10("v3", "v4", "v2", "v5")
            a(f"""v_lshrrev_b32 v5, 4, v3
v_and_b32 v6, 3, v3
v_lshl_add_u32 v5, v5, 2, v6
v_bfe_u32 v6, v3, 2, 2
v_lshl_add_u32 v5, v6, 3, v5
v_mul_u32_u24 v5, 3840, v5
v_lshl_add_u32 v{10+n}, v4, 4, v5""")
        a(f"""s_sub_u32 s6, {sWAVE}, 4
s_mul_i32 s7, s6, 1280
s_mul_i32 s8, {sHG}, 160
s_add_u32 s7, s7, s8
s_mul_i32 s6, s6, 5120""")
        self.tag()
        self.stamp(1)
        a("s_barrier")

        def chunk(c):
            a(f"s_add_u32 s8, s7, {c*122880}")
            for n in range(5):
                a(f"s_add_u32 m0, s6, {c*15360 + n*1024}\nbuffer_load_dwordx4 v{10+n}, {SW}, s8 offen lds")
        ah = o['ahead']
        for c in range(ah):
            chunk(c)
        for c in range(4):
            issued = min(4, c + ah)
            a(f"s_waitcnt vmcnt({5*(issued - c - 1)})")
            self.stamp(2 + c)
            a("s_barrier")
            if c + ah < 4:
                chunk(c + ah)
        self.wo_setup()
        l1, l2 = self.lab("L_w6"), self.lab("L_wg")
        a(f"s_cmp_eq_u32 {sWAVE}, 6\ns_cbranch_scc1 {l1}")
        self.wo_poll()
        self.stamp(7)
        a(f"s_barrier\ns_branch {l2}\n{l1}:\ns_barrier")
        self.wo_poll()
        a(f"{l2}:")
        self.stamp(8)
        self.wo_issue()
        self.stamp(9)
        a("s_waitcnt vmcnt(0)")
        self.stamp(10)
        a("s_barrier")
        self.end()

    def sel_gather(self):
        a = self.a
        lp = self.lab("L_sg")
        a(f"""v_lshlrev_b32 v2, 3, v0
v_add_u32 v3, 128, v0
v_min_u32 v3, 139, v3
v_lshlrev_b32 v3, 3, v3
s_mov_b32 s6, {RMAX}
{lp}:
buffer_load_dwordx2 v[4:5], v2, {SWS}, s6 offen sc1
buffer_load_dwordx2 v[6:7], v2, {SWS}, s6 offen offset:512 sc1
buffer_load_dwordx2 v[8:9], v3, {SWS}, s6 offen sc1
s_waitcnt vmcnt(0)
v_xor_b32 v5, {sTAG}, v5
v_xor_b32 v7, {sTAG}, v7
v_xor_b32 v9, {sTAG}, v9
v_or3_b32 v5, v5, v7, v9
v_cmp_ne_u32 vcc, 0, v5
s_cbranch_vccz {lp}_x
s_sub_u32 s3, s3, 1
s_cmp_gt_i32 s3, 0
s_cbranch_scc1 {lp}
{lp}_x:
v_max3_u32 v4, v4, v6, v8""")
        for sh in (8, 4, 2, 1):
            a(f"v_max_u32_dpp v4, v4, v4 row_ror:{sh} row_mask:0xf bank_mask:0xf")
        a("""v_readlane_b32 s6, v4, 0
v_readlane_b32 s7, v4, 16
v_readlane_b32 s8, v4, 32
v_readlane_b32 s9, v4, 48
s_max_u32 s6, s6, s7
s_max_u32 s8, s8, s9
s_max_u32 s14, s6, s8
s_and_b32 s15, s14, 0x7ff
s_sub_u32 s15, 2047, s15""")

    def aux(self):
        a = self.a
        a("L_aux:\ns_setprio 3")
        for n in range(5):
            a(f"v_add_u32 v2, {64*n}, v0")
            self.div10("v3", "v4", "v2", "v5")
            a(f"""v_bfe_u32 v5, v3, 3, 1
v_and_b32 v6, 3, v3
v_lshl_add_u32 v5, v5, 2, v6
v_bfe_u32 v6, v3, 2, 1
v_lshl_add_u32 v5, v6, 3, v5
v_mul_u32_u24 v5, 3, v5
v_lshrrev_b32 v6, 4, v3
v_add_u32 v5, v5, v6
v_mul_u32_u24 v5, 1280, v5
v_lshl_add_u32 v{10+n}, v4, 4, v5""")
        a(f"""v_mov_b32 v9, {hex(OOB)}
v_cmp_gt_u32 vcc, 32, v0
v_cndmask_b32 v15, v9, v12, vcc
s_lshl_b32 s6, s38, 4
s_add_u32 s6, s6, 128
s_mul_i32 s6, s6, 3840
s_mul_i32 s7, {sHG}, 160
s_add_u32 s6, s6, s7
s_add_u32 s7, s6, 2560
s_mov_b32 m0, {STG}
s_waitcnt lgkmcnt(0)""")
        for n in range(8):
            ad = f"v{10+n}" if n < 5 else ["v10", "v11", "v15"][n - 5]
            if n:
                a(f"s_mov_b32 m0, {STG + n*1024}")
            a(f"buffer_load_dwordx4 {ad}, {SW}, {'s6' if n < 5 else 's7'} offen lds")
        a(f"s_load_dword s39, s[48:49], {EPOCH}")
        self.stamp(1)
        a(f"""v_bfe_u32 v6, v0, 2, 3
v_mul_u32_u24 v6, 160, v6
v_add_u32 v6, {STG}, v6
v_and_b32 v7, 3, v0
v_lshl_add_u32 v3, v7, 3, v6
v_lshrrev_b32 v8, 5, v0
v_mul_u32_u24 v2, 2560, v8
v_add_u32 v2, v2, v3
v_add_u32 v3, 5120, v3
v_min_u32 v7, 2, v7
v_mul_u32_u24 v7, 2560, v7
v_add3_u32 v7, v7, v6, 32
v_cndmask_b32 v3, v7, v3, vcc
s_and_b32 s8, s38, 1
s_lshl_b32 s9, s8, 9
s_mul_i32 s8, s8, 384
s_add_u32 s8, s8, 3072
v_and_b32 v6, 31, v0
v_lshl_add_u32 v6, v6, 4, s9
v_lshl_add_u32 v4, v8, 10, v6
v_add_u32 v6, 2048, v6
v_bfe_u32 v7, v0, 4, 1
v_mul_u32_u24 v7, 12, v7
v_and_b32 v8, 15, v0
v_add_u32 v7, v7, v8
v_lshl_add_u32 v7, v7, 4, s8
v_cmp_gt_u32 s[10:11], 12, v8
v_cndmask_b32 v7, v9, v7, s[10:11]
v_cndmask_b32 v5, v7, v6, vcc
s_lshl_b32 s8, {sHG}, 6
s_lshr_b32 s9, s38, 1
s_add_u32 s8, s8, s9
s_mul_i32 s8, s8, 3840
s_add_u32 s8, s8, {PW}
s_add_u32 s9, s8, 61440
s_add_u32 s10, s9, 61440
s_add_u32 s11, s10, 61440""")
        self.tag()
        a("s_waitcnt vmcnt(0)")
        self.stamp(2)
        for j in range(8):
            h, z = j >> 1, j & 1
            for j2 in range(2):
                a(f"ds_read_b64_tr_b16 {vr(176+4*j+2*j2,2)}, v{2+z} offset:{40*h + 1280*j2}")
        for j in range(8):
            h, z = j >> 1, j & 1
            a(f"s_waitcnt lgkmcnt({14-2*j})")
            a(f"buffer_store_dwordx4 {vr(176+4*j,4)}, v{4+z}, {SWS}, s{8+h} offen sc1")
        self.stamp(3)
        a(f"""s_lshl_b32 s6, {sHG}, 7
s_lshl_b32 s7, s38, 2
s_add_u32 s6, s6, s7
s_add_u32 s6, s6, {PFLAG}
v_mov_b32 v6, s6
v_mov_b32 v7, {sTAG}
s_lshl_b32 s16, {sI}, 3
s_add_u32 s16, s16, {sXCD}
s_sub_u32 s16, s16, 224
s_cmp_lt_u32 s16, 27
s_cbranch_scc1 L_aux_nobar
s_barrier
L_aux_nobar:
s_mov_b64 exec, 1
s_waitcnt vmcnt(0)
buffer_store_dword v7, v6, {SWS}, 0 offen sc1
s_mov_b64 exec, -1""")
        self.stamp(4)
        a(f"""s_setprio 0
s_cmp_lt_u32 s16, 27
s_cbranch_scc1 L_aux_ffn
s_cmp_ge_u32 {sI}, 28
s_cbranch_scc0 L_aux_main""")
        self.end()

        a("L_aux_ffn:")
        self.sel_gather()
        self.stamp(5)
        a(f"""s_mul_i32 s6, s15, 1280
v_lshlrev_b32 v2, 4, v0
s_mov_b32 m0, 0
v_mov_b32 v4, s14
buffer_load_dwordx4 v2, {SX}, s6 offen lds
buffer_load_dwordx4 v2, {SX}, s6 offen offset:1024 lds
v_mov_b32 v5, {sTAG}
v_mov_b32 v3, 2048
ds_write_b64 v3, v[4:5]
s_waitcnt vmcnt(0) lgkmcnt(0)""")
        self.stamp(6)
        a("s_barrier")
        self.end()

        a(f"""L_aux_main:
s_cmp_ge_u32 {sHG}, 5
s_cbranch_scc0 L_aux_r
s_barrier
s_barrier
s_barrier
s_branch L_aux_j
L_aux_r:
v_and_b32 v8, 15, v0
v_lshrrev_b32 v9, 4, v0
v_mov_b32 v2, s20
v_mov_b32 v3, s21
v_mov_b32 v4, s12
v_mov_b32 v5, s13
v_cmp_eq_u32 vcc, 1, v8
v_cndmask_b32 v2, v2, v4, vcc
v_cndmask_b32 v3, v3, v5, vcc
v_lshlrev_b32 v4, 4, v9
v_add_co_u32 v2, vcc, v2, v4
v_addc_co_u32 v3, vcc, 0, v3, vcc""")
        for s in range(20):
            a(f"global_load_dwordx4 {vr(16+4*s,4)}, v[2:3], off offset:{64*s}")
        a(f"""s_lshl_b32 s6, {sHG}, 11
s_add_u32 s6, s6, {XB}
v_lshrrev_b32 v4, 1, v8
v_xor_b32 v4, v4, v9
v_lshlrev_b32 v4, 4, v4
v_lshl_add_u32 v4, v8, 7, v4
v_add_u32 v4, s6, v4
v_xor_b32 v5, 64, v4
s_barrier""")
        for s in range(10):
            a(f"ds_read_b128 {vr(96+4*s,4)}, v{4+(s&1)} offset:{(s>>1)*10240}")
        a("v_add_u32 v4, 51200, v4\nv_add_u32 v5, 51200, v5")
        for s in range(10, 20):
            a(f"ds_read_b128 {vr(96+4*s,4)}, v{4+(s&1)} offset:{((s-10)>>1)*10240}")
        a("s_barrier")
        a("s_waitcnt vmcnt(0) lgkmcnt(0)")
        for s in range(20):
            a(f"v_mfma_f32_16x16x32_bf16 v[208:211], {vr(16+4*s,4)}, {vr(96+4*s,4)}, {'0' if s == 0 else 'v[208:211]'}")
            if s == 9:
                a("s_barrier")
        a(f"""s_mul_i32 s6, {sB}, 73
s_lshl_b32 s7, {sHG}, 4
s_add_u32 s6, s6, s7
v_add_u32 v4, s6, v0
s_mul_i32 s7, {sP}, 8448
s_add_u32 s7, s7, {GG}
v_lshl_add_u32 v5, v4, 3, s7
s_sub_u32 s7, 2047, {sP}
v_lshlrev_b32 v6, 1, v4
v_sub_u32 v6, s7, v6
s_mul_i32 s8, {sRB}, 5
s_add_u32 s8, s8, {sHG}
s_lshl_b32 s8, s8, 3
s_add_u32 s8, s8, {RMAX}
v_mov_b32 v7, s8
s_mov_b32 s9, 0xfffff800
v_mov_b32 v11, {sTAG}
v_mov_b32 v13, {sTAG}
v_ashrrev_i32 v12, 31, v209
v_or_b32 v12, 0x80000000, v12
v_xor_b32 v12, v12, v209
v_and_or_b32 v12, v12, s9, v6
v_cmp_gt_u32 vcc, 1024, v4
v_mul_f32 v10, 0xbfb8aa3b, v208
v_cndmask_b32 v12, 0, v12, vcc
v_exp_f32 v10, v10
v_max_u32_dpp v12, v12, v12 row_ror:8 row_mask:0xf bank_mask:0xf
v_add_f32 v10, 1.0, v10
v_rcp_f32 v10, v10
v_max_u32_dpp v12, v12, v12 row_ror:4 row_mask:0xf bank_mask:0xf
v_max_u32_dpp v12, v12, v12 row_ror:2 row_mask:0xf bank_mask:0xf
v_max_u32_dpp v12, v12, v12 row_ror:1 row_mask:0xf bank_mask:0xf
s_mov_b64 exec, 1
buffer_store_dwordx2 v[12:13], v7, {SWS}, 0 offen sc1
s_mov_b64 exec, 0xffff
buffer_store_dwordx2 v[10:11], v5, {SWS}, 0 offen sc1
s_mov_b64 exec, -1
L_aux_j:""")
        self.stamp(5)
        a(f"""v_mov_b32 v2, {L_CNT}
v_mov_b32 v3, 0
ds_write_b32 v2, v3
s_waitcnt lgkmcnt(0)
s_barrier""")
        self.wo_setup()
        a("s_barrier")
        self.wo_poll()
        self.stamp(8)
        self.wo_issue()
        self.stamp(9)
        self.sel_gather()
        a(f"""s_and_b32 s6, s15, 1
s_lshl_b32 s6, s6, 4
s_lshr_b32 s7, s15, 7
s_add_u32 s6, s6, s7
s_bfe_u32 s7, s15, 0x60001
s_cmp_eq_u32 s6, {sRB2}
s_cselect_b32 s17, s7, -1
v_mov_b32 v2, {L_SEL}
v_mov_b32 v3, s17
ds_write_b32 v2, v3
s_waitcnt lgkmcnt(0)""")
        self.stamp(10)
        a(f"""s_barrier
s_cmp_lt_i32 s17, 0
s_cbranch_scc0 L_aux_y""")
        self.end()
        lp = self.lab("L_yg")
        a(f"""L_aux_y:
s_cmp_eq_u32 {sCB}, 6
s_cselect_b32 s6, 31, 47
v_min_u32 v2, s6, v0
s_mul_i32 s7, {sCB}, 768
v_lshl_add_u32 v3, v2, 4, s7
v_lshlrev_b32 v2, 3, v2
{lp}:
s_mov_b32 s6, {YY}""")
        for j in range(27):
            a(f"buffer_load_dwordx4 {vr(16+4*j,4)}, v3, {SWS}, s6 offen sc1\ns_add_u32 s6, s6, 5120")
        a("v_mov_b32 v4, 0\nv_mov_b32 v5, 0\nv_mov_b32 v6, 0\nv_mov_b32 v7, -1")
        for j in range(27):
            a(f"""s_waitcnt vmcnt({26-j})
v_max3_u32 v6, v6, v{17+4*j}, v{19+4*j}
v_min3_u32 v7, v7, v{17+4*j}, v{19+4*j}
v_add_f32 v4, v4, v{16+4*j}
v_add_f32 v5, v5, v{18+4*j}""")
        a(f"""v_xor_b32 v6, {sTAG}, v6
v_xor_b32 v7, {sTAG}, v7
v_or_b32 v6, v6, v7
v_cmp_ne_u32 vcc, 0, v6
s_cbranch_vccz {lp}_x
s_sub_u32 s3, s3, 1
s_cmp_gt_i32 s3, 0
s_cbranch_scc1 {lp}
{lp}_x:
ds_write_b64 v2, v[4:5] offset:{L_Y}
s_waitcnt lgkmcnt(0)""")
        self.stamp(11)
        a("s_barrier")
        self.end()

    def spare(self):
        a = self.a
        a(f"""L_spare:
s_lshl_b32 s16, {sI}, 3
s_add_u32 s16, s16, {sXCD}
s_sub_u32 s16, s16, 224
s_cmp_ge_u32 s16, 27
s_cbranch_scc1 L_wop
s_cmp_lt_u32 {sWAVE}, 5
s_cbranch_scc1 L_ffn""")
        self.end()
        PART, HB, YP = 4096, 8192, 16384
        Gr = lambda i: 16 + 8 * i
        Ur = lambda i: 20 + 8 * i
        Dr = lambda i: 144 + 4 * i
        AG, XV = 208, 224
        a(f"""L_ffn:
s_lshl_b32 s6, {sWAVE}, 7
v_lshrrev_b32 v2, 3, v0
v_lshl_add_u32 v10, v2, 4, s6
v_mul_u32_u24 v2, 3456, v10
v_and_b32 v3, 7, v0
v_lshl_add_u32 v2, v3, 4, v2
s_lshl_b32 s6, {sWAVE}, 6
v_add_u32 v11, s6, v0""")
        self.div80("v12", "v13", "v11", "v4")
        a(f"""v_mul_u32_u24 v3, {16*1280}, v12
v_lshl_add_u32 v3, v13, 4, v3
s_lshl_b32 s6, s16, 7
s_mul_i32 s7, s16, {64*1280}
s_waitcnt lgkmcnt(0)""")
        for i in range(16):
            a(f"buffer_load_dwordx4 {vr(Gr(i),4)}, v2, {SG}, s6 offen")
            a(f"buffer_load_dwordx4 {vr(Ur(i),4)}, v2, {SU}, s6 offen")
            a("s_add_u32 s6, s6, 3456")
        self.stamp(1)
        a("s_barrier")
        self.stamp(2)
        for i in range(16):
            a(f"buffer_load_dwordx4 {vr(Dr(i),4)}, v3, {SD}, s7 offen")
            a("s_add_u32 s7, s7, 1280")
        a(f"""v_lshlrev_b32 v10, 1, v10
v_mov_b32 v4, 2048
ds_read_b128 {vr(XV,4)}, v10
ds_read_b128 {vr(XV+4,4)}, v10 offset:16
ds_read_b64 v[14:15], v4""")
        for j in range(16):
            a(f"v_mov_b32 v{AG+j}, 0")
        a("s_waitcnt lgkmcnt(0)")

        def unpack(i, src):
            w = src + (i >> 1)
            lo, hi = 232 + 2 * (i & 1), 233 + 2 * (i & 1)
            if i & 1:
                a(f"v_lshrrev_b32 v{lo}, 16, v{w}\nv_and_b32 v{hi}, 0xffff0000, v{w}")
            else:
                a(f"v_and_b32 v{lo}, 0xffff, v{w}\nv_lshlrev_b32 v{hi}, 16, v{w}")
            return lo, hi
        for i in range(16):
            lo, hi = unpack(i, XV)
            a(f"s_waitcnt vmcnt({46-2*i})")
            for m, R in enumerate((Gr, Ur)):
                for d in range(4):
                    a(f"v_dot2c_f32_bf16 v{AG+8*m+2*d}, v{R(i)+d}, v{lo}")
                    a(f"v_dot2c_f32_bf16 v{AG+8*m+2*d+1}, v{R(i)+d}, v{hi}")
        self.stamp(3)
        a("s_nop 2")
        for j in range(8):
            a(f"v_permlane32_swap_b32 v{AG+j}, v{AG+8+j}")
        for j in range(8):
            a(f"v_add_f32 v{AG+j}, v{AG+j}, v{AG+8+j}")
        for j in range(4):
            a(f"v_permlane16_swap_b32 v{AG+j}, v{AG+4+j}")
        for j in range(4):
            a(f"v_add_f32 v{AG+j}, v{AG+j}, v{AG+4+j}")
        for j in range(4):
            a(f"v_add_f32_dpp v{AG+4+j}, v{AG+j}, v{AG+j} row_ror:8 row_mask:0xf bank_mask:0xf")
        a(f"""s_lshl_b32 s6, {sWAVE}, 9
v_lshrrev_b32 v4, 5, v0
v_lshl_add_u32 v4, v4, 8, s6
v_and_b32 v5, 7, v0
v_lshl_add_u32 v4, v5, 5, v4
v_and_b32 v5, 16, v0
v_add_u32 v4, v4, v5
ds_write_b128 v4, {vr(AG+4,4)} offset:{PART}
v_lshlrev_b32 v5, 2, v0
s_waitcnt lgkmcnt(0)
s_barrier""")
        for j in range(10):
            a(f"ds_read_b32 v{16+j}, v5 offset:{PART + 256*j}")
        a(f"""s_lshl_b32 s6, {sWAVE}, 7
v_lshl_add_u32 v6, v0, 1, s6
v_lshl_add_u32 v7, v12, 5, s6
v_and_b32 v8, 0xfffff800, v14
v_or_b32 v8, 0x400, v8
v_not_b32 v9, v8
v_ashrrev_i32 v9, 31, v9
v_or_b32 v9, 0x80000000, v9
v_xor_b32 v8, v8, v9
v_mul_f32 v8, 0xbfb8aa3b, v8
v_exp_f32 v8, v8
v_add_f32 v8, 1.0, v8
v_rcp_f32 v8, v8
s_waitcnt lgkmcnt(0)""")
        for j in range(1, 5):
            a(f"v_add_f32 v16, v16, v{16+2*j}\nv_add_f32 v17, v17, v{17+2*j}")
        a(f"""v_mul_f32 v18, 0xbfb8aa3b, v16
v_exp_f32 v18, v18
v_mul_f32 v16, v16, v17
v_add_f32 v18, 1.0, v18
v_rcp_f32 v18, v18
v_mul_f32 v16, v16, v18
v_cvt_pk_bf16_f32 v16, v16, v16
ds_write_b16 v6, v16 offset:{HB}
s_waitcnt lgkmcnt(0)
ds_read_b128 {vr(XV,4)}, v7 offset:{HB}
ds_read_b128 {vr(XV+4,4)}, v7 offset:{HB+16}""")
        for j in range(8):
            a(f"v_mov_b32 v{AG+j}, 0")
        a("s_waitcnt lgkmcnt(0)")
        self.stamp(4)
        for i in range(16):
            lo, hi = unpack(i, XV)
            a(f"s_waitcnt vmcnt({15-i})")
            for d in range(4):
                a(f"v_dot2c_f32_bf16 v{AG+2*d}, v{Dr(i)+d}, v{lo}")
                a(f"v_dot2c_f32_bf16 v{AG+2*d+1}, v{Dr(i)+d}, v{hi}")
        a(f"""v_lshlrev_b32 v4, 5, v11
v_lshlrev_b32 v5, 3, v11
v_lshlrev_b32 v6, 4, v11
ds_write_b128 v4, {vr(AG,4)} offset:{YP}
ds_write_b128 v4, {vr(AG+4,4)} offset:{YP+16}
s_mul_i32 s6, s16, 5120
s_add_u32 s6, s6, {YY}
s_waitcnt lgkmcnt(0)
s_barrier""")
        for j in range(4):
            a(f"ds_read_b64 {vr(16+2*j,2)}, v5 offset:{YP + 2560*j}")
        a(f"""v_mov_b32 v25, v15
v_mov_b32 v27, v15
s_waitcnt lgkmcnt(0)
v_add_f32 v16, v16, v18
v_add_f32 v17, v17, v19
v_add_f32 v20, v20, v22
v_add_f32 v21, v21, v23
v_add_f32 v16, v16, v20
v_add_f32 v17, v17, v21
v_mul_f32 v24, v8, v16
v_mul_f32 v26, v8, v17
buffer_store_dwordx4 v[24:27], v6, {SWS}, s6 offen sc1""")
        self.stamp(5)
        self.end()

        BUF = [0, 61440, 102400, 0]
        a(f"""L_wop:
s_sub_u32 s16, s16, 27
s_lshl_b32 s6, {sWAVE}, 6
v_add_u32 v11, s6, v0""")
        self.div80("v12", "v13", "v11", "v4")
        a(f"""v_lshlrev_b32 v4, 2, v12
v_xor_b32 v13, v13, v4
v_mul_u32_u24 v2, 1280, v12
v_lshl_add_u32 v2, v13, 4, v2
s_lshl_b32 s17, {sWAVE}, 10
s_mul_i32 s18, s16, {40*1280}
s_waitcnt lgkmcnt(0)
s_load_dword s39, s[48:49], {EPOCH}""")

        def wload(st):
            sk = self.lab("L_wl")
            a(f"s_cmp_ge_u32 {sWAVE}, 5\ns_cbranch_scc1 {sk}")
            for n in range(8):
                g, j2 = n >> 1, n & 1
                ra = 20 * (g >> 1) + 8 * (g & 1) + 4 * j2
                if st < 3:
                    a(f"s_add_u32 s6, s18, {(200*st + ra)*1280}")
                else:
                    a(f"""s_cmp_eq_u32 s16, 0
s_cselect_b32 s6, {(600 + ra)*1280}, s19
s_add_u32 s19, s19, {20*1280}""")
                a(f"s_add_u32 m0, s17, {BUF[st] + n*5120}\nbuffer_load_dwordx4 v2, {SWO}, s6 offen lds")
            a(f"{sk}:")
        wload(0)
        wload(1)
        a(f"""s_mul_i32 s19, s16, {160*1280}
s_sub_u32 s19, s19, {144*1280}
v_lshrrev_b32 v4, 4, v0
v_mul_u32_u24 v4, 10240, v4
v_bfe_u32 v5, v0, 2, 2
v_mul_u32_u24 v6, 1280, v5
v_add_u32 v4, v4, v6
v_lshlrev_b32 v5, 2, v5
v_and_b32 v6, 3, v0
v_mul_u32_u24 v6, 6, v6
s_mul_i32 s6, {sWAVE}, 24
v_add_u32 v6, s6, v6""")
        for j in range(6):
            a(f"""v_add_u32 v7, {j}, v6
v_min_u32 v7, 159, v7
v_lshrrev_b32 v8, 1, v7
v_xor_b32 v8, v8, v5
v_lshl_add_u32 v8, v8, 4, v4
v_and_b32 v7, 1, v7
v_lshl_add_u32 v{16+j}, v7, 3, v8""")
        a(f"""v_lshlrev_b32 v3, 4, v0
s_mul_i32 s20, {sWAVE}, 122880
s_mul_i32 s6, s16, 6144
s_add_u32 s20, s20, s6
s_add_u32 s20, s20, {PWO}
s_lshl_b32 s6, {sWAVE}, 7
s_lshl_b32 s7, s16, 2
s_add_u32 s6, s6, s7
s_add_u32 s6, s6, {WOFLAG}
v_mov_b32 v9, s6""")
        self.tag()
        a(f"v_mov_b32 v10, {sTAG}\ns_waitcnt vmcnt(8)")
        for st in range(4):
            self.stamp(1 + 2 * st)
            a("s_barrier")
            for j in range(6):
                for j2 in range(2):
                    a(f"ds_read_b64_tr_b16 {vr(32+4*j+2*j2,2)}, v{16+j} offset:{5120*j2}")
            a("s_add_u32 s21, s20, 4096")
            for j in range(6):
                a(f"s_waitcnt lgkmcnt({10-2*j})")
                a(f"buffer_store_dwordx4 {vr(32+4*j,4)}, v3, {SWS}, {'s20' if j < 4 else 's21'} offen offset:{(j&3)*1024} sc1")
            a(f"s_add_u32 s20, s20, {5*6144}")
            if st < 3:
                d = BUF[st + 1] - BUF[st]
                for j in range(6):
                    a(f"v_add_u32 v{16+j}, {d & 0xffffffff}, v{16+j}")
            if st < 2:
                wload(st + 2)
                l1, l2 = self.lab("L_w0"), self.lab("L_w1")
                a(f"""s_cmp_ge_u32 {sWAVE}, 5
s_cbranch_scc1 {l1}
s_waitcnt vmcnt(8)
s_branch {l2}
{l1}:
s_waitcnt vmcnt(0)
{l2}:""")
            else:
                a("s_waitcnt vmcnt(0)")
            a(f"""s_mov_b64 exec, 1
buffer_store_dword v10, v9, {SWS}, 0 offen offset:{20*st} sc1
s_mov_b64 exec, -1""")
            self.stamp(2 + 2 * st)
        self.end()

    def build(self):
        a = self.a
        a("; @launch grid=(256,1,1) block=(512,1,1) lds=163840")
        a('.amdgcn_target "amdgcn-amd-amdhsa--gfx950"\n.text')
        self.prologue()
        a("s_branch L_compute")
        self.aux()
        self.loaders()
        self.spare()
        a(".p2align 6\nL_compute:")
        self.compute()
        if self.diag:
            a(f"""L_diag_end:
s_mov_b64 exec, -1
s_waitcnt lgkmcnt(0)
s_lshl_b32 s6, s2, 3
s_add_u32 s6, s6, {sWAVE}
s_lshl_b32 s6, s6, 6
s_add_u32 s6, s6, {STAMP}
v_mov_b32 v0, s6""")
            for k in range(15):
                a(f"v_mov_b32 v{16+k}, s{72+2*k}")
            a("s_mov_b64 exec, 1")
            for j in range(4):
                a(f"global_store_dwordx4 v0, {vr(16+4*j,4)}, s[48:49] offset:{16*j}")
            a("s_endpgm")
        a(f".Lcode_end:\n.fill {self.o['code_lines']*32 + 64} - ((.Lcode_end - {NAME}) >> 2), 4, 0xbf800000")
        a(f""".section .rodata,"a"
.p2align 6
.amdhsa_kernel {NAME}
.amdhsa_next_free_vgpr 256
.amdhsa_next_free_sgpr 102
.amdhsa_accum_offset 256
.amdhsa_group_segment_fixed_size 0
.amdhsa_kernarg_size 96
.amdhsa_user_sgpr_count 2
.amdhsa_user_sgpr_kernarg_segment_ptr 1
.amdhsa_system_sgpr_workgroup_id_x 1
.end_amdhsa_kernel""")
        return a.render()


if __name__ == "__main__":
    out = sys.argv[1]
    diag = len(sys.argv) > 2 and sys.argv[2] == "diag"
    open(out, "w").write(G(diag).build())
```
